```python
import torch

def _softmax(x, axis=-1):
    return torch.softmax(x, dim=axis)
def _gelu(x):
    return torch.nn.functional.gelu(x, approximate="tanh")
def _silu(x):
    return torch.nn.functional.silu(x)
def _sigmoid(x):
    return torch.sigmoid(x)
def _layernorm(x, axis=-1, eps=1e-5):
    m = x.mean(dim=axis, keepdim=True)
    v = x.var(dim=axis, keepdim=True, unbiased=False)
    return (x - m) / torch.sqrt(v + eps)
def _scatter_add(tgt, idx, src, axis=0):
    return tgt.clone().index_add_(axis, idx, src)
def _segment_sum(src, seg, n):
    out = torch.zeros((n,) + src.shape[1:], dtype=src.dtype)
    return out.index_add_(0, seg, src)
def _pad(x, pw):
    flat = tuple(v for pair in reversed(pw) for v in pair)
    return torch.nn.functional.pad(x, flat)

kernel_name = 'sequential_preLN__sliding_local_dilated__mixer_token_mlp__prompt'

def setup_inputs():

    _w = (lambda a: (lambda t: t.to(torch.bfloat16) if t.is_floating_point() else t)(torch.as_tensor(a)))
    def _A_setup():
        B, S, D = 1, 2048, 640
        return {
            "x": _w((lambda *s: torch.randn(*s, dtype=torch.bfloat16) * 0.05)(B, S, D)),
            "wqkv": _w((lambda *s: torch.randn(*s, dtype=torch.bfloat16) * 0.05)(D, 3 * D)),
            "wo": _w((lambda *s: torch.randn(*s, dtype=torch.bfloat16) * 0.05)(D, D)),
        }
    _A_in = _A_setup()

    def _B_setup():
        B, S, D, F = 1, 2048, 640, 1536
        return {
            "x": _w((lambda *s: torch.randn(*s, dtype=torch.bfloat16) * 0.05)(B, S, D)),
            "w1": _w((lambda *s: torch.randn(*s, dtype=torch.bfloat16) * 0.8)(S, F) * (S ** -0.5)),
            "b1": _w((lambda *s: torch.randn(*s, dtype=torch.bfloat16) * 0.8)(F) * 0.02),
            "w2": _w((lambda *s: torch.randn(*s, dtype=torch.bfloat16) * 0.8)(F, S) * (F ** -0.5)),
            "b2": _w((lambda *s: torch.randn(*s, dtype=torch.bfloat16) * 0.8)(S) * 0.02),
        }
    _B_in = _B_setup()

    return {
        "A_x": _A_in["x"],
        "A_wqkv": _A_in["wqkv"],
        "A_wo": _A_in["wo"],
        "B_x": _B_in["x"],
        "B_w1": _B_in["w1"],
        "B_b1": _B_in["b1"],
        "B_w2": _B_in["w2"],
        "B_b2": _B_in["b2"],
    }

def reference(A_x, A_wqkv, A_wo, B_x, B_w1, B_b1, B_w2, B_b2):
    def _A_ref(x, wqkv, wo):
        B, S, D = x.shape
        H = 32; Dh = D // H
        W, dil = 8, 2
        qkv = (lambda x, *d: x.permute(*d))((x @ wqkv).reshape(B, S, 3, H, Dh), 2, 0, 3, 1, 4)
        q, k, v = qkv[0], qkv[1], qkv[2]
        scale = Dh ** -0.5
        pos = torch.arange(S)
        off = torch.arange(W) * dil
        idx = pos[:, None] - off[None, :]
        mask = idx >= 0
        idx_c = torch.where(mask, idx, 0).reshape(-1)
        kg = k[:, :, idx_c, :].reshape(B, H, S, W, Dh)
        vg = v[:, :, idx_c, :].reshape(B, H, S, W, Dh)
        logits = torch.einsum("bhsd,bhswd->bhsw", q, kg) * scale
        logits = torch.where(mask[None, None, :, :], logits, -1e9)
        attn = _softmax(logits, axis=-1)
        o = torch.einsum("bhsw,bhswd->bhsd", attn, vg)
        return (lambda x, *d: x.permute(*d))(o, 0, 2, 1, 3).reshape(B, S, D) @ wo

    def _B_ref(x, w1, b1, w2, b2):
        B, S, D = x.shape
        h = _layernorm(x, axis=-1)
        u = torch.einsum("bsd,sf->bdf", h, w1) + b1
        u = _gelu(u)
        y = torch.einsum("bdf,fs->bds", u, w2) + b2
        return (lambda x, *d: x.permute(*d))(y, 0, 2, 1)

    x = A_x
    h = x + _A_ref(_layernorm(x, axis=-1), A_wqkv, A_wo)
    h2 = h + _B_ref(_layernorm(h, axis=-1), B_w1, B_b1, B_w2, B_b2)
    return h2
```

```python
import re

REG_RE = re.compile(r'\b([vas])(\d+)\b|\b([vas])\[(\d+):(\d+)\]')
TRANS = ('v_exp_f32', 'v_log_f32', 'v_rcp_f32', 'v_rsq_f32', 'v_sqrt_f32', 'v_sin_f32', 'v_cos_f32')


def regs_of(tok):
    out = []
    for m in REG_RE.finditer(tok):
        if m.group(1):
            out.append((m.group(1), int(m.group(2))))
        else:
            out += [(m.group(3), i) for i in range(int(m.group(4)), int(m.group(5)) + 1)]
    if re.search(r'\bvcc\b', tok):
        out += [('s', 106), ('s', 107)]
    if re.search(r'\bm0\b', tok):
        out.append(('s', 124))
    return out


def split_ops(s):
    ops, depth, cur = [], 0, ''
    for ch in s:
        if ch == '[':
            depth += 1
        if ch == ']':
            depth -= 1
        if ch == ',' and depth == 0:
            ops.append(cur.strip())
            cur = ''
        else:
            cur += ch
    if cur.strip():
        ops.append(cur.strip())
    return ops


class Inst:
    __slots__ = ('text', 'op', 'kind', 'wr', 'rd', 'srcc', 'srcab', 'passes', 'pos', 'dpp', 'wide_store')


class Asm:
    def __init__(self):
        self.lines = []
        self.hist = []
        self.pos = 0
        self.lds_q = []
        self.n_inst = 0

    def raw(self, s):
        self.lines.append(s)

    def comment(self, s):
        self.lines.append('  ; ' + s)

    def label(self, l):
        self.lines.append(l + ':')

    def nop(self, n):
        while n > 0:
            k = min(n, 16)
            self.lines.append('  s_nop %d' % (k - 1))
            self.pos += k
            n -= k
            self.n_inst += 1

    def parse(self, text):
        i = Inst()
        i.text = text
        body = text.split(';')[0].strip()
        parts = body.split(None, 1)
        op = parts[0]
        rest = parts[1] if len(parts) > 1 else ''
        ops = split_ops(rest)
        i.op = op
        i.srcc, i.srcab, i.passes, i.dpp, i.wide_store = [], [], 0, False, False
        first = ops[0] if ops else ''
        if op.startswith('v_mfma'):
            i.kind = 'mfma'
            i.wr = regs_of(ops[0])
            i.srcab = regs_of(ops[1]) + regs_of(ops[2])
            i.srcc = regs_of(ops[3])
            i.rd = i.srcab + i.srcc
            i.passes = 8 if '32x32' in op else 4
        elif op.startswith('v_'):
            i.kind = 'valu'
            i.dpp = ('_dpp' in op) or ('row_' in rest) or ('quad_perm' in rest)
            if op.startswith('v_cmp'):
                i.wr = regs_of(ops[0])
                i.rd = sum((regs_of(o) for o in ops[1:]), [])
            elif op.startswith('v_permlane'):
                i.wr = regs_of(ops[0]) + regs_of(ops[1])
                i.rd = list(i.wr)
            elif op.startswith(('v_add_co', 'v_sub_co', 'v_addc_co', 'v_subb_co', 'v_mad_u64')):
                i.wr = regs_of(ops[0]) + regs_of(ops[1])
                i.rd = sum((regs_of(o) for o in ops[2:]), [])
            else:
                i.wr = regs_of(ops[0])
                i.rd = sum((regs_of(o) for o in ops[1:]), [])
                if op.startswith(('v_fmac', 'v_dot2c', 'v_pk_fmac')) or i.dpp:
                    i.rd += i.wr
        elif op.startswith('ds_'):
            i.kind = 'ds'
            if op.startswith(('ds_read', 'ds_bpermute', 'ds_swizzle', 'ds_permute')):
                i.wr = regs_of(ops[0])
                i.rd = sum((regs_of(o) for o in ops[1:]), [])
            else:
                i.wr = []
                i.rd = sum((regs_of(o) for o in ops), [])
        elif op.startswith(('buffer_', 'global_')):
            i.kind = 'vmem'
            is_lds = re.search(r'\blds\b', rest) is not None or '_lds_' in op
            if 'load' in op and not is_lds:
                i.wr = regs_of(ops[0])
                i.rd = sum((regs_of(o) for o in ops[1:]), [])
            else:
                i.wr = []
                i.rd = sum((regs_of(o) for o in ops), [])
                if is_lds:
                    i.rd.append(('s', 124))
                if 'store' in op and ('x3' in op or 'x4' in op):
                    i.wide_store = True
        elif op.startswith('s_'):
            i.kind = 'salu'
            if op.startswith(('s_cmp', 's_waitcnt', 's_barrier', 's_cbranch', 's_branch', 's_nop', 's_endpgm',
                              's_setprio', 's_sleep', 's_bitcmp')):
                i.wr = []
                i.rd = sum((regs_of(o) for o in ops), [])
            else:
                i.wr = regs_of(ops[0])
                i.rd = sum((regs_of(o) for o in ops[1:]), [])
        else:
            raise ValueError('unknown op ' + text)
        return i

    def need(self, c):
        need = 0
        crd, cwr = set(c.rd), set(c.wr)
        for p in reversed(self.hist):
            dist = self.pos - p.pos - 1
            if dist >= 20:
                break
            pw = set(p.wr)
            req = 0
            if p.kind == 'valu':
                vw = {r for r in pw if r[0] in 'va'}
                sw = {r for r in pw if r[0] == 's'}
                if c.kind == 'mfma' and vw & crd:
                    req = max(req, 2)
                if c.kind == 'valu':
                    if c.op.startswith('v_permlane') and vw & crd:
                        req = max(req, 2)
                    if c.dpp and vw & crd:
                        req = max(req, 2)
                    if c.op.startswith(('v_readfirstlane', 'v_readlane')) and vw & crd:
                        req = max(req, 1)
                    if p.op.replace('_e32', '').replace('_e64', '') in TRANS and vw & crd and \
                            c.op.replace('_e32', '') not in TRANS:
                        req = max(req, 1)
                    if sw & crd:
                        req = max(req, 2)
                    if ('sdwa' in p.op or 'op_sel' in p.text) and vw & crd:
                        req = max(req, 1)
                if c.kind == 'vmem' and sw & crd:
                    req = max(req, 5)
                if c.kind == 'salu' and sw & crd:
                    req = max(req, 2)
                if p.op.startswith('v_dot2') and (vw & (crd | cwr)):
                    same_acc = (c.op == p.op) and not (vw & set(regs_of(','.join(split_ops(c.text.split(None, 1)[1])[1:3]))))
                    if not same_acc:
                        req = max(req, 3)
            elif p.kind == 'mfma':
                hi = 12 if p.passes == 8 else 8
                mid = 10 if p.passes == 8 else 6
                if c.kind == 'mfma':
                    if pw & set(c.srcab):
                        req = max(req, hi)
                    if pw & set(c.srcc):
                        if not (p.wr == c.srcc and p.passes == c.passes):
                            req = max(req, mid)
                    elif pw & cwr:
                        req = max(req, hi)
                elif c.kind in ('valu', 'vmem', 'ds'):
                    if pw & (crd | cwr):
                        req = max(req, hi)
                    if c.kind == 'valu' and set(p.srcc) & cwr:
                        req = max(req, 7 if p.passes == 8 else 3)
            elif p.kind == 'salu':
                if ('s', 124) in pw and c.kind == 'vmem' and ('s', 124) in crd:
                    req = max(req, 1)
            elif p.kind == 'vmem':
                if p.wide_store and c.kind == 'valu' and set(p.rd) & cwr:
                    req = max(req, 2)
            need = max(need, req - dist)
        return need

    def lds_wait_for(self, regs):
        regs = set(regs)
        last = -1
        for k, d in enumerate(self.lds_q):
            if d & regs:
                last = k
        if last >= 0:
            n = len(self.lds_q) - 1 - last
            self._emit_plain('s_waitcnt lgkmcnt(%d)' % n)
            self.lds_q = self.lds_q[last + 1:]

    def lgkm0(self):
        self._emit_plain('s_waitcnt lgkmcnt(0)')
        self.lds_q = []

    def _emit_plain(self, text):
        i = self.parse(text)
        i.pos = self.pos
        self.pos += 1
        self.hist.append(i)
        self.lines.append('  ' + text)
        self.n_inst += 1

    def __call__(self, text):
        for t in text.strip().split('\n'):
            t = t.strip()
            if not t or t.startswith(';'):
                continue
            self.emit(t)

    def emit(self, text):
        i = self.parse(text)
        if i.op == 's_waitcnt':
            m = re.search(r'lgkmcnt\((\d+)\)', text)
            if m:
                n = int(m.group(1))
                if n < len(self.lds_q):
                    self.lds_q = self.lds_q[len(self.lds_q) - n:] if n else []
        else:
            self.lds_wait_for(set(i.rd) | set(i.wr))
        if i.kind == 'ds' and len(self.lds_q) >= 15:
            self._emit_plain('s_waitcnt lgkmcnt(14)')
            self.lds_q = self.lds_q[1:]
        n = self.need(i)
        if n > 0:
            self.nop(n)
        i.pos = self.pos
        self.pos += 1
        self.hist.append(i)
        if len(self.hist) > 64:
            self.hist = self.hist[-40:]
        self.lines.append('  ' + text)
        self.n_inst += 1
        if i.kind == 'ds':
            self.lds_q.append(set(i.wr))

    def text(self):
        return '\n'.join(self.lines) + '\n'


def vr(b, n=1):
    return 'v%d' % b if n == 1 else 'v[%d:%d]' % (b, b + n - 1)


def sr(b, n=1):
    return 's%d' % b if n == 1 else 's[%d:%d]' % (b, b + n - 1)


class RegAlloc:
    def __init__(self, start=0, limit=256):
        self.next = start
        self.limit = limit

    def get(self, n=1, align=None):
        if align is None:
            align = 1 if n == 1 else (2 if n == 2 else 4)
        self.next = (self.next + align - 1) // align * align
        b = self.next
        self.next += n
        assert self.next <= self.limit, 'out of registers'
        return b
```

```python
import sys, struct, math
sys.path.insert(0, 'gen')
from asmlib import Asm, RegAlloc, vr, sr

NAME = 'sequential_preLN__sliding_local_dilated__mixer_token_mlp__prompt'
O_OFF, HF_OFF, G_OFF, ST_OFF = 0x0, 0x300000, 0x600000, 0x800000
O_SZ, HF_SZ, G_SZ, ST_SZ = 2621440, 2621440, 1966080, 16384
OOB = 0x80000000
EPS = 1e-5


def f32(x):
    return '0x%08x' % struct.unpack('<I', struct.pack('<f', x))[0]


def srd(a, d, lo, hi, nbytes, off=0):
    if off:
        a(f's_add_u32 s{d}, s{lo}, {off}')
        a(f's_addc_u32 s{d+1}, s{hi}, 0')
    else:
        a(f's_mov_b32 s{d}, s{lo}')
        a(f's_mov_b32 s{d+1}, s{hi}')
    a(f's_mov_b32 s{d+2}, {nbytes}')
    a(f's_mov_b32 s{d+3}, 0x00020000')


PROF = False
PROF_OFF = 0x1000000


class Prof:
    def __init__(self, a, kidx):
        self.a, self.k, self.n = a, kidx, 0

    def stamp(self):
        if PROF:
            self.a(f's_memtime s[{64+2*self.n}:{65+2*self.n}]')
            self.n += 1
            assert self.n <= 16

    def lstamp(self, s_iter):
        if PROF:
            self.a('s_memtime s[62:63]')
            self.a('s_waitcnt lgkmcnt(0)')
            self.a(f's_lshl_b64 exec, 1, s{s_iter}')
            self.a(f'v_mov_b32 v{self.vp}, s62')
            self.a('s_mov_b64 exec, -1')

    def flush(self, s_w, vt):
        if not PROF:
            return
        a = self.a
        self.stamp()
        a('s_waitcnt lgkmcnt(0)')
        a(f's_cmp_lg_u32 s{s_w}, 0')
        a(f's_cbranch_scc1 PROF_END{self.k}')
        srd(a, 96, 30, 31, 1 << 20, PROF_OFF + self.k * 65536)
        a('s_lshl_b32 s100, s2, 7')
        a('s_mov_b64 exec, 0xffff')
        a(f'v_lshlrev_b32 v{vt+1}, 2, v0')
        a(f'buffer_store_dword v{self.vp}, v{vt+1}, s[96:99], s100 offen offset:64')
        a('s_mov_b64 exec, 1')
        a(f'v_mov_b32 v{vt+1}, 0')
        for i in range(self.n):
            a(f'v_mov_b32 v{vt}, s{64+2*i}')
            a(f'buffer_store_dword v{vt}, v{vt+1}, s[96:99], s100 offen offset:{4*i}')
        a.label(f'PROF_END{self.k}')


def header(a, name):
    a.raw(f'.globl {name}\n.p2align 8\n.type {name},@function\n{name}:')


def xlane_reduce(a, op, v, t):
    a(f'v_mov_b32 v{t}, v{v}')
    a(f'v_permlane16_swap_b32 v{v}, v{t}')
    a(f'{op} v{v}, v{v}, v{t}')
    a(f'v_mov_b32 v{t}, v{v}')
    a(f'v_permlane32_swap_b32 v{v}, v{t}')
    a(f'{op} v{v}, v{v}, v{t}')


P1_STG = 35840
P1_TB = 4 * P1_STG
P1_LDS = P1_TB + 2304
QP = 272


def gen_p1():
    a = Asm()
    header(a, 'p1_kernel')
    SX, SW, SO, SST = 8, 12, 16, 20
    s_w, s_rb, s_hp, s_mh, s_nq = 24, 25, 26, 27, 28
    s_i, s_buf, s_pbuf = 29, 32, 33
    s_m0x, s_m0x3 = 34, 35
    s_sx, s_sw, s_t = 36, 37, 38
    s_ones = 39
    s_nrx, s_nrw = 40, 41
    M_P, M_A, M_B, M_G0, M_ALLOW = 44, 46, 48, 50, 52
    s_c = 54
    s_so = 55
    R = RegAlloc(1, 136)
    v_lane, v_l15, v_g = R.get(), R.get(), R.get()
    v_x, v_x2, v_x3, v_W = R.get(), R.get(), R.get(), R.get()
    c_xa = [R.get(), R.get()]
    c_wa = [R.get(), R.get()]
    v_xa = [R.get(), R.get()]
    v_wa = [R.get(), R.get()]
    t0, t1, t2, t3 = R.get(), R.get(), R.get(), R.get()
    v_sum = [R.get() for _ in range(5)]
    v_sq = [R.get() for _ in range(5)]
    v_cs = [R.get() for _ in range(2)]
    acc = [[R.get(4) for _ in range(2)] for _ in range(5)]
    xf = [[R.get(4) for _ in range(5)] for _ in range(2)]
    wf = [[R.get(4) for _ in range(2)] for _ in range(2)]

    pf = Prof(a, 0); pf.vp = R.get()
    a('s_cmp_ge_u32 s2, 256')
    a('s_cbranch_scc1 P1_END')
    pf.stamp()
    a('s_load_dwordx4 s[4:7], s[0:1], 0')
    a('s_load_dwordx2 s[30:31], s[0:1], 80')
    a(f'v_lshrrev_b32 v{t0}, 6, v0')
    a(f'v_and_b32 v{v_lane}, 63, v0')
    a(f'v_readfirstlane_b32 s{s_w}, v{t0}')
    a(f'v_and_b32 v{v_l15}, 15, v0')
    a(f'v_bfe_u32 v{v_g}, v0, 4, 2')
    a(f's_and_b32 s{s_t}, s2, 7')
    a(f's_lshr_b32 s{s_i}, s2, 3')
    a(f's_lshr_b32 s{s_rb}, s{s_t}, 1')
    a(f's_lshl_b32 s{s_rb}, s{s_rb}, 2')
    a(f's_lshr_b32 s{s_hp}, s{s_i}, 3')
    a(f's_add_u32 s{s_rb}, s{s_rb}, s{s_hp}')
    a(f's_and_b32 s{s_t}, s{s_t}, 1')
    a(f's_lshl_b32 s{s_t}, s{s_t}, 3')
    a(f's_and_b32 s{s_hp}, s{s_i}, 7')
    a(f's_add_u32 s{s_hp}, s{s_hp}, s{s_t}')
    a(f's_lshr_b32 s{s_mh}, s{s_w}, 2')
    a(f's_and_b32 s{s_nq}, s{s_w}, 3')
    a(f's_lshl_b32 s{s_t}, s{s_rb}, 7')
    a(f's_lshl_b32 s{s_i}, s{s_w}, 3')
    a(f's_add_u32 s{s_t}, s{s_t}, s{s_i}')
    a(f's_sub_u32 s{s_t}, s{s_t}, 16')
    a(f'v_lshrrev_b32 v{t0}, 3, v{v_lane}')
    a(f'v_add_u32 v{t0}, s{s_t}, v{t0}')
    a(f's_movk_i32 s{s_i}, 1280')
    a(f'v_mul_lo_u32 v{t0}, v{t0}, s{s_i}')
    a(f's_and_b32 s{s_t}, s{s_w}, 1')
    a(f's_lshl_b32 s{s_t}, s{s_t}, 2')
    a(f'v_add_u32 v{t1}, s{s_t}, v{v_g}')
    a(f'v_and_b32 v{t2}, 7, v{v_lane}')
    a(f'v_xor_b32 v{t1}, v{t1}, v{t2}')
    a(f'v_lshl_add_u32 v{v_x}, v{t1}, 4, v{t0}')
    a(f'v_add_u32 v{v_x2}, 81920, v{v_x}')
    a(f'v_add_u32 v{t0}, 163840, v{v_x}')
    a(f'v_mov_b32 v{v_x3}, {OOB:#x}')
    a(f's_cmp_lt_u32 s{s_w}, 2')
    a(f's_cselect_b64 s[42:43], -1, 0')
    a(f'v_cndmask_b32 v{v_x3}, v{v_x3}, v{t0}, s[42:43]')
    a(f's_lshl_b32 s{s_m0x}, s{s_w}, 10')
    a(f's_add_u32 s{s_t}, s{s_m0x}, 16384')
    a(f's_cmp_lt_u32 s{s_w}, 2')
    a(f's_cselect_b32 s{s_m0x3}, s{s_t}, 34816')
    a(f's_bfe_u32 s{s_t}, s{s_w}, 0x10001')
    a(f's_lshl_b32 s{s_t}, s{s_t}, 2')
    a(f'v_or_b32 v{t0}, s{s_t}, v{v_g}')
    a(f'v_lshrrev_b32 v{t1}, 1, v{v_l15}')
    a(f'v_xor_b32 v{t0}, v{t0}, v{t1}')
    a(f'v_and_b32 v{t1}, 1, v{v_l15}')
    a(f'v_lshl_add_u32 v{t0}, v{t0}, 1, v{t1}')
    a(f'v_mul_u32_u24 v{t1}, 13, v{t0}')
    a(f'v_lshrrev_b32 v{t1}, 6, v{t1}')
    a(f'v_mul_u32_u24 v{t2}, 5, v{t1}')
    a(f'v_sub_u32 v{t2}, v{t0}, v{t2}')
    a(f'v_mul_u32_u24 v{t1}, 1280, v{t1}')
    a(f'v_lshl_add_u32 v{t1}, v{t2}, 4, v{t1}')
    a(f's_lshl_b32 s{s_t}, s{s_w}, 2')
    a(f'v_add_u32 v{t2}, s{s_t}, v{v_g}')
    a(f'v_mul_u32_u24 v{t2}, 3840, v{t2}')
    a(f's_mul_i32 s{s_t}, s{s_hp}, 80')
    a(f'v_add3_u32 v{v_W}, v{t1}, v{t2}, s{s_t}')
    a(f'v_mov_b32 v{t1}, {OOB:#x}')
    a(f'v_cmp_eq_u32 vcc, 15, v{t0}')
    a(f'v_cndmask_b32 v{v_W}, v{v_W}, v{t1}, vcc')
    a('s_waitcnt lgkmcnt(0)')
    pf.stamp()
    srd(a, SX, 4, 5, 2621440)
    srd(a, SW, 6, 7, 2457600)

    def issue_stage():
        a(f's_add_u32 m0, s{s_pbuf}, s{s_m0x}')
        a(f's_add_u32 s{s_t}, s{s_sw}, 122880')
        a(f'buffer_load_dwordx4 v{v_x}, s[{SX}:{SX+3}], s{s_sx} offen lds')
        a(f's_add_u32 m0, m0, 8192')
        a(f'buffer_load_dwordx4 v{v_x2}, s[{SX}:{SX+3}], s{s_sx} offen lds')
        a(f's_add_u32 m0, m0, {18432-8192}')
        a(f'buffer_load_dwordx4 v{v_W}, s[{SW}:{SW+3}], s{s_sw} offen lds')
        a(f's_add_u32 m0, m0, 8192')
        a(f's_add_u32 s{s_sw}, s{s_sw}, 245760')
        a(f'buffer_load_dwordx4 v{v_W}, s[{SW}:{SW+3}], s{s_t} offen lds')
        a(f's_add_u32 m0, s{s_pbuf}, s{s_m0x3}')
        a(f'buffer_load_dwordx4 v{v_x3}, s[{SX}:{SX+3}], s{s_sx} offen lds')
        a(f's_add_u32 s{s_sx}, s{s_sx}, 128')

    a(f's_mov_b32 s{s_sx}, 0')
    a(f's_mov_b32 s{s_sw}, 0')
    for st in range(3):
        a(f's_mov_b32 s{s_pbuf}, {st*P1_STG}')
        issue_stage()
    a(f's_mov_b32 s{s_pbuf}, {3*P1_STG}')
    a(f's_mov_b32 s{s_buf}, 0')
    a(f's_mov_b32 s{s_i}, 0')
    a(f's_mov_b32 s{s_ones}, 0x3f803f80')
    srd(a, SO, 30, 31, O_SZ, O_OFF)
    srd(a, SST, 30, 31, ST_SZ, ST_OFF)
    a(f'v_mov_b32 v{t0}, 0')
    a(f'v_lshlrev_b32 v{t1}, 2, v0')
    a(f'v_add_u32 v{t1}, {P1_TB}, v{t1}')
    a(f'ds_write_b32 v{t1}, v{t0}')
    a(f's_or_b32 s{s_t}, s{s_hp}, s{s_w}')
    a(f's_cmp_lg_u32 s{s_t}, 0')
    a('s_cbranch_scc1 P1_NOZ')
    z = xf[0][0]
    for k in range(4):
        a(f'v_mov_b32 v{z+k}, 0')
    a(f'v_lshlrev_b32 v{t1}, 4, v{v_lane}')
    a(f's_lshl_b32 s{s_t}, s{s_rb}, 10')
    a(f'buffer_store_dwordx4 v[{z}:{z+3}], v{t1}, s[{SST}:{SST+3}], s{s_t} offen')
    a('s_waitcnt vmcnt(0)')
    a.label('P1_NOZ')
    a(f's_mul_i32 s{s_t}, s{s_mh}, 10240')
    a(f'v_lshrrev_b32 v{t0}, 1, v{v_l15}')
    a(f'v_xor_b32 v{t0}, v{t0}, v{v_g}')
    a(f'v_lshlrev_b32 v{t0}, 4, v{t0}')
    a(f'v_lshl_add_u32 v{t0}, v{v_l15}, 7, v{t0}')
    a(f'v_add_u32 v{c_xa[0]}, s{s_t}, v{t0}')
    a(f'v_xor_b32 v{c_xa[1]}, 64, v{c_xa[0]}')
    a(f'v_bfe_u32 v{t0}, v{v_lane}, 2, 2')
    a(f'v_and_b32 v{t1}, 1, v{v_g}')
    a(f'v_lshl_or_b32 v{t1}, v{t1}, 2, v{t0}')
    a(f'v_lshl_add_u32 v{t0}, v{v_g}, 3, v{t0}')
    a(f'v_lshlrev_b32 v{t0}, 8, v{t0}')
    a(f'v_and_b32 v{t2}, 3, v{v_lane}')
    a(f'v_lshl_add_u32 v{t0}, v{t2}, 3, v{t0}')
    a(f'v_add_u32 v{t0}, 18432, v{t0}')
    a(f's_lshl_b32 s{s_t}, s{s_nq}, 1')
    a(f'v_xor_b32 v{t1}, s{s_t}, v{t1}')
    a(f'v_lshl_add_u32 v{c_wa[0]}, v{t1}, 5, v{t0}')
    a(f'v_xor_b32 v{c_wa[1]}, 32, v{c_wa[0]}')
    for i in range(5):
        a(f'v_mov_b32 v{v_sum[i]}, 0')
        a(f'v_mov_b32 v{v_sq[i]}, 0')
        for tt in range(2):
            for k in range(4):
                a(f'v_mov_b32 v{acc[i][tt]+k}, 0')
    a(f'v_mov_b32 v{v_cs[0]}, 0')
    a(f'v_mov_b32 v{v_cs[1]}, 0')
    pf.stamp()
    a.lgkm0()

    a.label('P1_LOOP')
    a('s_waitcnt vmcnt(10)')
    a('s_barrier')
    for j in range(2):
        a(f'v_add_u32 v{v_xa[j]}, s{s_buf}, v{c_xa[j]}')
        a(f'v_add_u32 v{v_wa[j]}, s{s_buf}, v{c_wa[j]}')

    def reads(j):
        for tt in range(2):
            for h in range(2):
                a(f'ds_read_b64_tr_b16 v[{wf[j][tt]+2*h}:{wf[j][tt]+2*h+1}], v{v_wa[tt]} offset:{(32*j+4*h)*256}')
        for i in range(5):
            a(f'ds_read_b128 v[{xf[j][i]}:{xf[j][i]+3}], v{v_xa[j]} offset:{i*2048}')

    reads(0)
    a(f's_cmp_lt_u32 s{s_i}, 7')
    a(f's_cselect_b32 s{SX+2}, 2621440, 0')
    a(f's_cselect_b32 s{SW+2}, 2457600, 0')
    issue_stage()
    reads(1)
    for j in range(2):
        for i in range(5):
            for tt in range(2):
                a(f'v_mfma_f32_16x16x32_bf16 v[{acc[i][tt]}:{acc[i][tt]+3}], v[{wf[j][tt]}:{wf[j][tt]+3}], '
                  f'v[{xf[j][i]}:{xf[j][i]+3}], v[{acc[i][tt]}:{acc[i][tt]+3}]')
    for j in range(2):
        for k in range(4):
            for tt in range(2):
                a(f'v_dot2_f32_bf16 v{v_cs[tt]}, v{wf[j][tt]+k}, s{s_ones}, v{v_cs[tt]}')
    a(f's_and_b32 s{s_t}, s{s_i}, 3')
    a(f's_cmp_lg_u32 s{s_t}, s{s_nq}')
    a('s_cbranch_scc1 P1_NOSTAT')
    for j in range(2):
        for k in range(4):
            for i in range(5):
                a(f'v_dot2_f32_bf16 v{v_sum[i]}, v{xf[j][i]+k}, s{s_ones}, v{v_sum[i]}')
                a(f'v_dot2_f32_bf16 v{v_sq[i]}, v{xf[j][i]+k}, v{xf[j][i]+k}, v{v_sq[i]}')
    a.label('P1_NOSTAT')
    pf.lstamp(s_i)
    a(f's_mov_b32 s{s_pbuf}, s{s_buf}')
    a(f's_add_u32 s{s_buf}, s{s_buf}, {P1_STG}')
    a(f's_cmp_eq_u32 s{s_buf}, {4*P1_STG}')
    a(f's_cselect_b32 s{s_buf}, 0, s{s_buf}')
    a(f's_add_u32 s{s_i}, s{s_i}, 1')
    a(f's_cmp_lt_u32 s{s_i}, 10')
    a('s_cbranch_scc1 P1_LOOP')

    a.nop(4)
    a(f's_mul_i32 s{s_t}, s{s_mh}, 640')
    a(f's_add_u32 s{s_t}, s{s_t}, {P1_TB}')
    a(f'v_lshlrev_b32 v{t0}, 3, v{v_l15}')
    a(f'v_add_u32 v{t0}, s{s_t}, v{t0}')
    for i in range(5):
        a(f'ds_add_f32 v{t0}, v{v_sum[i]} offset:{i*128}')
        a(f'ds_add_f32 v{t0}, v{v_sq[i]} offset:{i*128+4}')
    a(f's_cmp_eq_u32 s{s_mh}, 0')
    a(f's_cselect_b32 s{s_t}, 512, 0')
    a(f's_lshl_b32 s{s_so}, s{s_nq}, 7')
    a(f's_add_u32 s{s_t}, s{s_t}, s{s_so}')
    a(f's_add_u32 s{s_t}, s{s_t}, {P1_TB+1280}')
    a(f'v_lshlrev_b32 v{t1}, 2, v{v_l15}')
    a(f'v_add_u32 v{t1}, s{s_t}, v{t1}')
    a(f'ds_add_f32 v{t1}, v{v_cs[0]}')
    a(f'ds_add_f32 v{t1}, v{v_cs[1]} offset:64')
    a(f'v_and_b32 v{t2}, 1, v{v_l15}')
    a(f'v_cmp_eq_u32 s[{M_P}:{M_P+1}], 1, v{t2}')
    a(f'v_lshl_add_u32 v{t2}, v{v_g}, 2, v{t2}')
    a(f'v_cmp_le_u32 s[{M_A}:{M_A+1}], v{t2}, v{v_l15}')
    a(f'v_add_u32 v{t2}, 2, v{t2}')
    a(f'v_cmp_le_u32 s[{M_B}:{M_B+1}], v{t2}, v{v_l15}')
    a(f'v_cmp_eq_u32 s[{M_G0}:{M_G0+1}], 0, v{v_g}')
    a('s_waitcnt vmcnt(0) lgkmcnt(0)')
    a('s_barrier')
    pf.stamp()
    st = xf[0]
    cs = wf[0]
    for i in range(5):
        a(f'ds_read_b64 v[{st[i]}:{st[i]+1}], v{t0} offset:{i*128}')
    a(f's_lshl_b32 s{s_t}, s{s_nq}, 7')
    a(f's_add_u32 s{s_t}, s{s_t}, {P1_TB+1280}')
    a(f'v_lshlrev_b32 v{t1}, 4, v{v_g}')
    a(f'v_add_u32 v{t1}, s{s_t}, v{t1}')
    a(f'ds_read_b128 v[{cs[0]}:{cs[0]+3}], v{t1}')
    a(f'ds_read_b128 v[{cs[1]}:{cs[1]+3}], v{t1} offset:64')
    a(f's_mul_i32 s{s_t}, s{s_mh}, {80*QP}')
    a(f's_lshl_b32 s{s_so}, s{s_nq}, 6')
    a(f's_add_u32 s{s_t}, s{s_t}, s{s_so}')
    a(f'v_mul_u32_u24 v{t2}, {QP}, v{v_l15}')
    a(f'v_lshl_add_u32 v{t2}, v{v_g}, 3, v{t2}')
    a(f'v_add_u32 v{t2}, s{s_t}, v{t2}')
    a(f's_mov_b32 s{s_t}, {f32(1.0/640)}')
    a(f's_mov_b32 s{s_so}, {f32(EPS)}')
    for i in range(5):
        m, q, r = st[i], st[i] + 1, st[i] + 2
        a(f'v_mul_f32 v{m}, s{s_t}, v{m}')
        a(f'v_mul_f32 v{q}, s{s_t}, v{q}')
        a(f'v_fma_f32 v{q}, -v{m}, v{m}, v{q}')
        a(f'v_max_f32 v{q}, 0, v{q}')
        a(f'v_add_f32 v{q}, s{s_so}, v{q}')
        a(f'v_rsq_f32 v{r}, v{q}')
    for i in range(5):
        m, r = st[i], st[i] + 2
        for tt in range(2):
            A = acc[i][tt]
            for k in range(4):
                a(f'v_fma_f32 v{A+k}, -v{m}, v{cs[tt]+k}, v{A+k}')
            for k in range(4):
                a(f'v_mul_f32 v{A+k}, v{r}, v{A+k}')
            a(f'v_cvt_pk_bf16_f32 v{A}, v{A}, v{A+1}')
            a(f'v_cvt_pk_bf16_f32 v{A+1}, v{A+2}, v{A+3}')
            a(f'ds_write_b64 v{t2}, v[{A}:{A+1}] offset:{i*16*QP + tt*32}')
    s_hh, s_j0 = s_m0x, s_m0x3
    a(f's_and_b32 s{s_hh}, s{s_w}, 1')
    a(f's_lshr_b32 s{s_j0}, s{s_w}, 1')
    a(f's_lshl_b32 s{s_j0}, s{s_j0}, 1')
    vq, vqh, vv, voA, voB, vhm = c_xa[0], c_xa[1], c_wa[0], c_wa[1], v_xa[0], v_xa[1]
    a(f's_mul_i32 s{s_t}, s{s_j0}, {16*QP}')
    a(f's_mul_i32 s{s_so}, s{s_hh}, 40')
    a(f's_add_u32 s{s_t}, s{s_t}, s{s_so}')
    a(f'v_mul_u32_u24 v{t0}, {QP}, v{v_l15}')
    a(f'v_add_u32 v{vqh}, s{s_t}, v{t0}')
    a(f'v_lshl_add_u32 v{vq}, v{v_g}, 3, v{vqh}')
    a(f'v_bfe_u32 v{t0}, v{v_lane}, 2, 2')
    a(f'v_lshl_add_u32 v{t0}, v{v_g}, 2, v{t0}')
    a(f'v_mul_u32_u24 v{t0}, {QP}, v{t0}')
    a(f'v_and_b32 v{t1}, 3, v{v_lane}')
    a(f'v_lshl_add_u32 v{t0}, v{t1}, 3, v{t0}')
    a(f'v_add_u32 v{vv}, s{s_t}, v{t0}')
    a(f's_mul_i32 s{s_t}, s{s_hp}, 10')
    a(f's_mul_i32 s{s_so}, s{s_hh}, 5')
    a(f's_add_u32 s{s_t}, s{s_t}, s{s_so}')

    def qoff(dst, qreg):
        a(f'v_lshrrev_b32 v{t1}, 3, v{qreg}')
        a(f'v_lshlrev_b32 v{t1}, 10, v{t1}')
        a(f'v_and_b32 v{t3}, 3, v{qreg}')
        a(f'v_lshl_add_u32 v{t1}, v{t3}, 8, v{t1}')
        a(f'v_bfe_u32 v{t3}, v{qreg}, 2, 1')
        a(f'v_lshl_add_u32 v{t1}, v{t3}, 3, v{t1}')
        a(f'v_lshl_add_u32 v{dst}, v{v_l15}, 4, v{t1}')
    a(f'v_add_u32 v{t0}, s{s_t}, v{v_g}')
    qoff(voA, t0)
    a(f's_add_u32 s{s_t}, s{s_t}, 4')
    a(f'v_mov_b32 v{t0}, s{s_t}')
    qoff(voB, t0)
    a(f'v_mov_b32 v{t0}, {OOB:#x}')
    a(f'v_cndmask_b32 v{voB}, v{t0}, v{voB}, s[{M_G0}:{M_G0+1}]')
    a(f'v_mov_b32 v{t0}, 0xffff')
    a(f'v_mov_b32 v{t1}, 0xffff0000')
    a(f'v_cndmask_b32 v{vhm}, v{t0}, v{t1}, s[{M_P}:{M_P+1}]')
    a(f's_or_b32 s{s_t}, s{s_rb}, s{s_j0}')
    a(f's_cmp_lg_u32 s{s_t}, 0')
    a(f's_cselect_b64 s[{M_ALLOW}:{M_ALLOW+1}], -1, 0')
    a(f's_mov_b32 s{s_c}, {f32((20 ** -0.5) * math.log2(math.e))}')
    a(f's_lshl_b32 s{s_t}, s{s_rb}, 3')
    a(f's_add_u32 s{s_t}, s{s_t}, s{s_j0}')
    a(f's_mul_i32 s{s_so}, s{s_t}, 20480')
    a('s_waitcnt lgkmcnt(0)')
    a('s_barrier')
    pf.stamp()
    pool = RegAlloc(acc[0][0], 128)
    Kf = [pool.get(4) for _ in range(3)]
    Qf = [pool.get(4) for _ in range(2)]
    Vf = [[pool.get(4) for _ in range(2)] for _ in range(2)]
    S = [[pool.get(4) for _ in range(2)] for _ in range(2)]
    P = [pool.get(4) for _ in range(2)]
    Oa = [[pool.get(4) for _ in range(2)] for _ in range(2)]
    tmp = [[pool.get() for _ in range(6)] for _ in range(2)]
    T = 16 * QP
    for k in range(3):
        a(f'ds_read_b64 v[{Kf[k]}:{Kf[k]+1}], v{vq} offset:{k*T+80}')
        a(f'ds_read_b64 v[{Kf[k]+2}:{Kf[k]+3}], v{vqh} offset:{k*T+80+32}')
    for u in range(2):
        a(f'ds_read_b64 v[{Qf[u]}:{Qf[u]+1}], v{vq} offset:{(u+1)*T}')
        a(f'ds_read_b64 v[{Qf[u]+2}:{Qf[u]+3}], v{vqh} offset:{(u+1)*T+32}')
    for u in range(2):
        for dt in range(2):
            a(f'ds_read_b64_tr_b16 v[{Vf[u][dt]}:{Vf[u][dt]+1}], v{vv} offset:{u*T+160+32*dt}')
            a(f'ds_read_b64_tr_b16 v[{Vf[u][dt]+2}:{Vf[u][dt]+3}], v{vv} offset:{(u+1)*T+160+32*dt}')
    for u in range(2):
        a(f'v_cndmask_b32 v{Qf[u]+2}, 0, v{Qf[u]+2}, s[{M_G0}:{M_G0+1}]')
        a(f'v_cndmask_b32 v{Qf[u]+3}, 0, v{Qf[u]+3}, s[{M_G0}:{M_G0+1}]')
    for u in range(2):
        for k in range(2):
            a(f'v_mfma_f32_16x16x32_bf16 v[{S[u][k]}:{S[u][k]+3}], v[{Kf[u+k]}:{Kf[u+k]+3}], v[{Qf[u]}:{Qf[u]+3}], 0')
    ninf = t0
    a(f'v_mov_b32 v{ninf}, 0xff800000')
    for u in range(2):
        xa, xb, ya, yb, mx, tt_ = tmp[u]
        D0, D1 = S[u]
        a(f'v_cndmask_b32 v{xa}, v{D0}, v{D0+1}, s[{M_P}:{M_P+1}]')
        a(f'v_cndmask_b32 v{xb}, v{D0+2}, v{D0+3}, s[{M_P}:{M_P+1}]')
        a(f'v_cndmask_b32 v{ya}, v{D1}, v{D1+1}, s[{M_P}:{M_P+1}]')
        a(f'v_cndmask_b32 v{yb}, v{D1+2}, v{D1+3}, s[{M_P}:{M_P+1}]')
        if u == 0:
            a(f'v_cndmask_b32 v{xa}, v{ninf}, v{xa}, s[{M_ALLOW}:{M_ALLOW+1}]')
            a(f'v_cndmask_b32 v{xb}, v{ninf}, v{xb}, s[{M_ALLOW}:{M_ALLOW+1}]')
        a(f'v_cndmask_b32 v{xa}, v{xa}, v{ya}, s[{M_A}:{M_A+1}]')
        a(f'v_cndmask_b32 v{xb}, v{xb}, v{yb}, s[{M_B}:{M_B+1}]')
        a(f'v_max_f32 v{mx}, v{xa}, v{xb}')
    for u in range(2):
        xa, xb, ya, yb, mx, tt_ = tmp[u]
        a(f'v_mov_b32 v{tt_}, v{mx}')
    for u in range(2):
        xa, xb, ya, yb, mx, tt_ = tmp[u]
        a(f'v_permlane16_swap_b32 v{mx}, v{tt_}')
    for u in range(2):
        xa, xb, ya, yb, mx, tt_ = tmp[u]
        a(f'v_max_f32 v{mx}, v{mx}, v{tt_}')
        a(f'v_mov_b32 v{tt_}, v{mx}')
    for u in range(2):
        xa, xb, ya, yb, mx, tt_ = tmp[u]
        a(f'v_permlane32_swap_b32 v{mx}, v{tt_}')
    for u in range(2):
        xa, xb, ya, yb, mx, tt_ = tmp[u]
        a(f'v_max_f32 v{mx}, v{mx}, v{tt_}')
        a(f'v_mul_f32 v{mx}, s{s_c}, v{mx}')
        a(f'v_fma_f32 v{xa}, v{xa}, s{s_c}, -v{mx}')
        a(f'v_fma_f32 v{xb}, v{xb}, s{s_c}, -v{mx}')
        a(f'v_exp_f32 v{xa}, v{xa}')
        a(f'v_exp_f32 v{xb}, v{xb}')
    for u in range(2):
        xa, xb, ya, yb, mx, tt_ = tmp[u]
        a(f'v_add_f32 v{mx}, v{xa}, v{xb}')
        a(f'v_mov_b32 v{tt_}, v{mx}')
    for u in range(2):
        xa, xb, ya, yb, mx, tt_ = tmp[u]
        a(f'v_permlane16_swap_b32 v{mx}, v{tt_}')
    for u in range(2):
        xa, xb, ya, yb, mx, tt_ = tmp[u]
        a(f'v_add_f32 v{mx}, v{mx}, v{tt_}')
        a(f'v_mov_b32 v{tt_}, v{mx}')
    for u in range(2):
        xa, xb, ya, yb, mx, tt_ = tmp[u]
        a(f'v_permlane32_swap_b32 v{mx}, v{tt_}')
    for u in range(2):
        xa, xb, ya, yb, mx, tt_ = tmp[u]
        a(f'v_add_f32 v{mx}, v{mx}, v{tt_}')
        a(f'v_rcp_f32 v{mx}, v{mx}')
    for u in range(2):
        xa, xb, ya, yb, mx, tt_ = tmp[u]
        a(f'v_mul_f32 v{xa}, v{xa}, v{mx}')
        a(f'v_mul_f32 v{xb}, v{xb}, v{mx}')
        a(f'v_cvt_pk_bf16_f32 v{xa}, v{xa}, v{xa}')
        a(f'v_cvt_pk_bf16_f32 v{xb}, v{xb}, v{xb}')
        a(f'v_and_b32 v{xa}, v{xa}, v{vhm}')
        a(f'v_and_b32 v{xb}, v{xb}, v{vhm}')
        a(f'v_cndmask_b32 v{P[u]}, v{xa}, 0, s[{M_A}:{M_A+1}]')
        a(f'v_cndmask_b32 v{P[u]+1}, v{xb}, 0, s[{M_B}:{M_B+1}]')
        a(f'v_cndmask_b32 v{P[u]+2}, 0, v{xa}, s[{M_A}:{M_A+1}]')
        a(f'v_cndmask_b32 v{P[u]+3}, 0, v{xb}, s[{M_B}:{M_B+1}]')
    for u in range(2):
        for dt in range(2):
            a(f'v_mfma_f32_16x16x32_bf16 v[{Oa[u][dt]}:{Oa[u][dt]+3}], v[{Vf[u][dt]}:{Vf[u][dt]+3}], v[{P[u]}:{P[u]+3}], 0')
    a(f's_add_u32 s{s_t}, s{s_so}, 20480')
    for u in range(2):
        so = s_so if u == 0 else s_t
        for dt in range(2):
            O = Oa[u][dt]
            a(f'v_cvt_pk_bf16_f32 v{O}, v{O}, v{O+1}')
            a(f'v_cvt_pk_bf16_f32 v{O+1}, v{O+2}, v{O+3}')
            a(f'buffer_store_dwordx2 v[{O}:{O+1}], v{voA if dt == 0 else voB}, s[{SO}:{SO+3}], s{so} offen')
    pf.flush(s_w, t0)
    a.label('P1_END')
    a('s_endpgm')
    return a, max(R.next, pool.next)


P2_LDS = 102400


def ident_frag(a, dst, v_l15, v_g, esrc, t0, t1, t2, smask):
    a(f'v_lshrrev_b32 v{t0}, 3, v{v_l15}')
    a(f'v_add_u32 v{t0}, {esrc}, v{t0}')
    a(f'v_cmp_eq_u32 s[{smask}:{smask+1}], v{t0}, v{v_g}')
    a(f'v_and_b32 v{t0}, 1, v{v_l15}')
    a(f'v_lshlrev_b32 v{t0}, 4, v{t0}')
    a(f'v_mov_b32 v{t1}, 0x3f80')
    a(f'v_lshlrev_b32 v{t1}, v{t0}, v{t1}')
    a(f'v_cndmask_b32 v{t1}, 0, v{t1}, s[{smask}:{smask+1}]')
    a(f'v_bfe_u32 v{t0}, v{v_l15}, 1, 2')
    for dd in range(4):
        a(f'v_cmp_eq_u32 vcc, {dd}, v{t0}')
        a(f'v_cndmask_b32 v{dst+dd}, 0, v{t1}, vcc')


def gen_p2():
    a = Asm()
    header(a, 'p2_kernel')
    SX, SWO, SO, SST, SHF = 8, 12, 16, 20, 24
    s_w, s_rb, s_cb, s_t, s_u, s_so, s_S = 32, 33, 34, 35, 36, 37, 38
    R = RegAlloc(1, 256)
    v_lane, v_l15, v_g = R.get(), R.get(), R.get()
    t0, t1, t2, t3 = R.get(), R.get(), R.get(), R.get()
    v_l16 = R.get()
    vwo = [R.get() for _ in range(5)]
    vxr, vxr2 = R.get(), R.get()
    vb = [R.get(), R.get()]
    of = [R.get(4) for _ in range(20)]
    xfr = [R.get(4) for _ in range(3)]
    idf = [R.get(4) for _ in range(2)]
    acc = [R.get(4) for _ in range(5)]
    bf = [[R.get(4) for _ in range(5)] for _ in range(2)]
    pf = Prof(a, 1); pf.vp = R.get()
    a('s_cmp_ge_u32 s2, 256')
    a('s_cbranch_scc1 P2_END')
    pf.stamp()
    a('s_load_dwordx2 s[4:5], s[0:1], 0')
    a('s_load_dwordx2 s[6:7], s[0:1], 16')
    a('s_load_dwordx2 s[30:31], s[0:1], 80')
    a(f'v_lshrrev_b32 v{t0}, 6, v0')
    a(f'v_and_b32 v{v_lane}, 63, v0')
    a(f'v_readfirstlane_b32 s{s_w}, v{t0}')
    a(f'v_and_b32 v{v_l15}, 15, v0')
    a(f'v_bfe_u32 v{v_g}, v0, 4, 2')
    a(f'v_lshlrev_b32 v{v_l16}, 4, v{v_lane}')
    a(f's_and_b32 s{s_t}, s2, 7')
    a(f's_lshr_b32 s{s_u}, s2, 3')
    a(f's_lshl_b32 s{s_rb}, s{s_t}, 2')
    a(f's_lshr_b32 s{s_t}, s{s_u}, 3')
    a(f's_add_u32 s{s_rb}, s{s_rb}, s{s_t}')
    a(f's_and_b32 s{s_cb}, s{s_u}, 7')
    a(f's_lshl_b32 s{s_S}, s{s_rb}, 2')
    a(f's_add_u32 s{s_S}, s{s_S}, s{s_w}')
    for i in range(5):
        a(f'v_add_u32 v{t0}, {64*i}, v{v_lane}')
        a(f'v_mul_u32_u24 v{t1}, 205, v{t0}')
        a(f'v_lshrrev_b32 v{t1}, 11, v{t1}')
        a(f'v_mul_u32_u24 v{t2}, 10, v{t1}')
        a(f'v_sub_u32 v{t2}, v{t0}, v{t2}')
        a(f'v_mul_u32_u24 v{t1}, 1280, v{t1}')
        a(f'v_lshl_add_u32 v{vwo[i]}, v{t2}, 4, v{t1}')
        if i in (1, 2, 3):
            a(f'v_subrev_u32 v{vwo[i]}, {1024*i}, v{vwo[i]}')
    a('s_waitcnt lgkmcnt(0)')
    pf.stamp()
    srd(a, SWO, 6, 7, 819200)
    srd(a, SO, 30, 31, O_SZ, O_OFF)
    srd(a, SX, 4, 5, 2621440)
    a(f's_mul_i32 s{s_so}, s{s_S}, 20480')
    a(f's_mul_i32 s{s_t}, s{s_w}, {32*1280}')
    a(f's_mul_i32 s{s_u}, s{s_cb}, 160')
    a(f's_add_u32 s{s_t}, s{s_t}, s{s_u}')
    a(f's_mul_i32 s{s_u}, s{s_w}, {32*160}')
    for st in range(5):
        a(f's_mov_b32 m0, s{s_u}')
        for k in range(4):
            a(f'buffer_load_dwordx4 v[{of[4*st+k]}:{of[4*st+k]+3}], v{v_l16}, s[{SO}:{SO+3}], s{s_so} offen offset:{1024*k}')
        for i in range(4):
            a(f'buffer_load_dwordx4 v{vwo[i]}, s[{SWO}:{SWO+3}], s{s_t} offen offset:{1024*i} lds')
        a(f's_add_u32 m0, s{s_u}, 4096')
        a(f's_add_u32 s{s_so}, s{s_so}, 4096')
        a(f'buffer_load_dwordx4 v{vwo[4]}, s[{SWO}:{SWO+3}], s{s_t} offen lds')
        a(f's_add_u32 s{s_t}, s{s_t}, {128*1280}')
        a(f's_add_u32 s{s_u}, s{s_u}, {128*160}')
        pf.stamp()
    a(f's_lshl_b32 s{s_t}, s{s_S}, 4')
    a(f'v_add_u32 v{t0}, s{s_t}, v{v_l15}')
    a(f'v_mul_u32_u24 v{t0}, 1280, v{t0}')
    a(f'v_lshl_add_u32 v{t0}, v{v_g}, 4, v{t0}')
    a(f's_mul_i32 s{s_u}, s{s_cb}, 160')
    a(f'v_add_u32 v{vxr}, s{s_u}, v{t0}')
    a(f'v_mov_b32 v{t0}, {OOB:#x}')
    a(f'v_cmp_gt_u32 vcc, 2, v{v_g}')
    a(f'v_cndmask_b32 v{vxr2}, v{t0}, v{vxr}, vcc')
    a(f'buffer_load_dwordx4 v[{xfr[0]}:{xfr[0]+3}], v{vxr}, s[{SX}:{SX+3}], 0 offen')
    a(f'buffer_load_dwordx4 v[{xfr[1]}:{xfr[1]+3}], v{vxr}, s[{SX}:{SX+3}], 0 offen offset:64')
    a(f'buffer_load_dwordx4 v[{xfr[2]}:{xfr[2]+3}], v{vxr2}, s[{SX}:{SX+3}], 0 offen offset:128')
    srd(a, SST, 30, 31, ST_SZ, ST_OFF)
    srd(a, SHF, 30, 31, HF_SZ, HF_OFF)
    ident_frag(a, idf[0], v_l15, v_g, '0', t0, t1, t2, 40)
    ident_frag(a, idf[1], v_l15, v_g, '2', t0, t1, t2, 40)
    a(f'v_bfe_u32 v{t0}, v{v_lane}, 2, 2')
    a(f'v_lshl_add_u32 v{t0}, v{v_g}, 2, v{t0}')
    a(f'v_mul_u32_u24 v{t0}, 160, v{t0}')
    a(f'v_and_b32 v{t1}, 3, v{v_lane}')
    a(f'v_lshl_add_u32 v{vb[0]}, v{t1}, 3, v{t0}')
    a(f'v_add_u32 v{vb[1]}, 51200, v{vb[0]}')

    def breads(j):
        base, jj = (vb[0], j) if j < 10 else (vb[1], j - 10)
        for t in range(5):
            for h in range(2):
                b = bf[j & 1][t] + 2 * h
                a(f'ds_read_b64_tr_b16 v[{b}:{b+1}], v{base} offset:{(32*jj+16*h)*160+32*t}')

    for st in range(5):
        pf.stamp()
        a(f's_waitcnt vmcnt({9*(4-st)+3})')
        a('s_barrier')
        breads(4 * st)
        for k in range(4):
            j = 4 * st + k
            if k < 3:
                breads(j + 1)
            for t in range(5):
                c = '0' if j == 0 else f'v[{acc[t]}:{acc[t]+3}]'
                a(f'v_mfma_f32_16x16x32_bf16 v[{acc[t]}:{acc[t]+3}], v[{of[j]}:{of[j]+3}], v[{bf[j&1][t]}:{bf[j&1][t]+3}], {c}')
    pf.stamp()
    a('s_waitcnt vmcnt(0)')
    for t in range(5):
        a(f'v_mfma_f32_16x16x32_bf16 v[{acc[t]}:{acc[t]+3}], v[{xfr[t>>1]}:{xfr[t>>1]+3}], v[{idf[t&1]}:{idf[t&1]+3}], v[{acc[t]}:{acc[t]+3}]')
    vh = vxr
    a(f'v_lshrrev_b32 v{t0}, 1, v{v_g}')
    a(f'v_lshlrev_b32 v{t0}, 9, v{t0}')
    a(f'v_lshl_add_u32 v{t0}, v{v_l15}, 4, v{t0}')
    a(f'v_and_b32 v{t1}, 1, v{v_g}')
    a(f'v_lshl_add_u32 v{vh}, v{t1}, 3, v{t0}')
    sm = [of[0] + k for k in range(4)]
    sq = [of[1] + k for k in range(4)]
    un = [of[2] + k for k in range(4)]
    for k in range(4):
        a(f'v_mov_b32 v{sm[k]}, 0')
        a(f'v_mov_b32 v{sq[k]}, 0')
    a(f's_mul_i32 s{s_u}, s{s_cb}, 5')
    for t in range(5):
        A = acc[t]
        a(f's_add_u32 s{s_t}, s{s_u}, {t}')
        a(f's_lshr_b32 s{s_so}, s{s_t}, 1')
        a(f's_lshl_b32 s{s_so}, s{s_so}, 7')
        a(f's_add_u32 s{s_so}, s{s_so}, s{s_S}')
        a(f's_lshl_b32 s{s_so}, s{s_so}, 10')
        a(f's_and_b32 s{s_t}, s{s_t}, 1')
        a(f's_lshl_b32 s{s_t}, s{s_t}, 8')
        a(f's_add_u32 s{s_so}, s{s_so}, s{s_t}')
        a(f'v_cvt_pk_bf16_f32 v{A}, v{A}, v{A+1}')
        a(f'v_cvt_pk_bf16_f32 v{A+1}, v{A+2}, v{A+3}')
        a(f'buffer_store_dwordx2 v[{A}:{A+1}], v{vh}, s[{SHF}:{SHF+3}], s{s_so} offen')
        a(f'v_lshlrev_b32 v{un[0]}, 16, v{A}')
        a(f'v_and_b32 v{un[1]}, 0xffff0000, v{A}')
        a(f'v_lshlrev_b32 v{un[2]}, 16, v{A+1}')
        a(f'v_and_b32 v{un[3]}, 0xffff0000, v{A+1}')
        for k in range(4):
            a(f'v_add_f32 v{sm[k]}, v{sm[k]}, v{un[k]}')
            a(f'v_fmac_f32 v{sq[k]}, v{un[k]}, v{un[k]}')
    for sh in (8, 4, 2, 1):
        for r in sm + sq:
            a(f'v_add_f32_dpp v{r}, v{r}, v{r} row_ror:{sh} row_mask:0xf bank_mask:0xf')
    a(f'v_and_b32 v{t0}, 4, v{v_l15}')
    a(f'v_cmp_ne_u32 vcc, 0, v{t0}')
    for k in range(4):
        a(f'v_cndmask_b32 v{sm[k]}, v{sm[k]}, v{sq[k]}, vcc')
    a(f'v_and_b32 v{t0}, 1, v{v_l15}')
    a(f'v_cmp_ne_u32 vcc, 0, v{t0}')
    a(f'v_cndmask_b32 v{sm[0]}, v{sm[0]}, v{sm[1]}, vcc')
    a(f'v_cndmask_b32 v{sm[2]}, v{sm[2]}, v{sm[3]}, vcc')
    a(f'v_and_b32 v{t0}, 2, v{v_l15}')
    a(f'v_cmp_ne_u32 vcc, 0, v{t0}')
    a(f'v_cndmask_b32 v{sm[0]}, v{sm[0]}, v{sm[2]}, vcc')
    a(f'v_and_b32 v{t0}, 3, v{v_l15}')
    a(f'v_lshl_add_u32 v{t0}, v{v_g}, 2, v{t0}')
    a(f'v_lshlrev_b32 v{t0}, 3, v{t0}')
    a(f'v_and_b32 v{t1}, 4, v{v_l15}')
    a(f'v_add_u32 v{t0}, v{t0}, v{t1}')
    a(f'v_mov_b32 v{t1}, {OOB:#x}')
    a(f'v_cmp_gt_u32 vcc, 8, v{v_l15}')
    a(f'v_cndmask_b32 v{t0}, v{t1}, v{t0}, vcc')
    a(f's_lshl_b32 s{s_t}, s{s_S}, 7')
    a(f'buffer_atomic_add_f32 v{sm[0]}, v{t0}, s[{SST}:{SST+3}], s{s_t} offen')
    pf.flush(s_w, t0)
    a.label('P2_END')
    a('s_endpgm')
    return a, R.next


P3_TB = 131072
P3_LDS = P3_TB + 16384


def gen_p3():
    a = Asm()
    header(a, 'p3_kernel')
    SW1, SHF, SST, SB1, SG = 8, 12, 16, 20, 24
    s_w, s_dt, s_ft, s_t, s_u, s_it = 32, 33, 34, 35, 36, 37
    s_h0, s_h1, s_sw, s_m0 = 38, 39, 40, 41
    R = RegAlloc(1, 256)
    v_lane, v_l15, v_gp = R.get(), R.get(), R.get()
    t0, t1, t2, t3 = R.get(), R.get(), R.get(), R.get()
    v_l16 = R.get()
    vw = [R.get() for _ in range(4)]
    va = [R.get(), R.get()]
    vt = R.get()
    b1r = [R.get(2) for _ in range(4)]
    hf = [[[R.get(4) for _ in range(2)] for _ in range(2)] for _ in range(4)]
    acc = [[R.get(16, 4) for _ in range(2)] for _ in range(2)]
    af = [[R.get(4) for _ in range(2)] for _ in range(2)]
    tb = [R.get(16, 4) for _ in range(2)]
    hn = [[R.get(4) for _ in range(2)] for _ in range(2)]
    tmp = [R.get(8, 4) for _ in range(2)]
    pf = Prof(a, 2); pf.vp = R.get()
    a('s_cmp_ge_u32 s2, 240')
    a('s_cbranch_scc1 P3_END')
    pf.stamp()
    a('s_load_dwordx4 s[4:7], s[0:1], 32')
    a('s_load_dwordx2 s[30:31], s[0:1], 80')
    a(f'v_lshrrev_b32 v{t0}, 6, v0')
    a(f'v_and_b32 v{v_lane}, 63, v0')
    a(f'v_readfirstlane_b32 s{s_w}, v{t0}')
    a(f'v_and_b32 v{v_l15}, 15, v0')
    a(f'v_bfe_u32 v{v_gp}, v0, 5, 1')
    a(f'v_lshlrev_b32 v{v_l16}, 4, v{v_lane}')
    a(f's_and_b32 s{s_t}, s2, 7')
    a(f's_lshr_b32 s{s_u}, s2, 3')
    a(f's_mul_i32 s{s_ft}, s{s_u}, 13')
    a(f's_lshr_b32 s{s_ft}, s{s_ft}, 6')
    a(f's_mul_i32 s{s_dt}, s{s_ft}, 5')
    a(f's_sub_u32 s{s_dt}, s{s_u}, s{s_dt}')
    a(f's_lshr_b32 s{s_u}, s{s_t}, 2')
    a(f's_mul_i32 s{s_u}, s{s_u}, 5')
    a(f's_add_u32 s{s_dt}, s{s_dt}, s{s_u}')
    a(f's_and_b32 s{s_u}, s{s_t}, 3')
    a(f's_mul_i32 s{s_u}, s{s_u}, 6')
    a(f's_add_u32 s{s_ft}, s{s_ft}, s{s_u}')
    a(f'v_bfe_u32 v{t0}, v{v_lane}, 4, 1')
    a(f'v_lshlrev_b32 v{t0}, 2, v{t0}')
    a(f'v_and_b32 v{t1}, 7, v{v_lane}')
    a(f'v_xor_b32 v{t0}, v{t0}, v{t1}')
    a(f'v_lshrrev_b32 v{t1}, 3, v{v_lane}')
    a(f'v_mul_u32_u24 v{t1}, 3072, v{t1}')
    a(f'v_lshl_add_u32 v{vw[0]}, v{t0}, 4, v{t1}')
    for i in range(1, 4):
        a(f'v_add_u32 v{vw[i]}, {i*(8*3072-1024)}, v{vw[0]}')
    a(f'v_lshlrev_b32 v{t2}, 6, v{v_lane}')
    a(f's_mul_i32 s{s_sw}, s{s_w}, {512*3072}')
    a(f's_lshl_b32 s{s_t}, s{s_ft}, 7')
    a(f's_add_u32 s{s_sw}, s{s_sw}, s{s_t}')
    a(f's_lshl_b32 s{s_h0}, s{s_dt}, 8')
    a(f's_lshl_b32 s{s_t}, s{s_w}, 5')
    a(f's_add_u32 s{s_h0}, s{s_h0}, s{s_t}')
    a(f's_lshl_b32 s{s_h0}, s{s_h0}, 10')
    a(f's_add_u32 s{s_h1}, s{s_h0}, {128*1024}')
    a(f's_lshl_b32 s{s_m0}, s{s_w}, 15')
    a(f's_lshl_b32 s{s_u}, s{s_w}, 12')
    a('s_waitcnt lgkmcnt(0)')
    pf.stamp()
    srd(a, SST, 30, 31, ST_SZ, ST_OFF)
    srd(a, SW1, 4, 5, 6291456)
    srd(a, SHF, 30, 31, HF_SZ, HF_OFF)
    srd(a, SB1, 6, 7, 3072)
    stt = acc[0][0]
    for k in range(4):
        a(f'buffer_load_dwordx4 v[{stt+4*k}:{stt+4*k+3}], v{t2}, s[{SST}:{SST+3}], s{s_u} offen offset:{16*k}')
    a(f's_lshr_b32 s{s_t}, s{s_w}, 1')
    a(f's_lshl_b32 s{s_t}, s{s_t}, 6')
    a(f's_lshl_b32 s{s_u}, s{s_ft}, 7')
    a(f's_add_u32 s{s_t}, s{s_t}, s{s_u}')
    a(f'v_lshlrev_b32 v{t3}, 3, v{v_gp}')
    for q in range(4):
        a(f'buffer_load_dwordx2 v[{b1r[q]}:{b1r[q]+1}], v{t3}, s[{SB1}:{SB1+3}], s{s_t} offen offset:{16*q}')

    def issue_w(slot):
        a(f's_add_u32 m0, s{s_m0}, {slot*4096}')
        a('s_nop 0')
        for i in range(4):
            a(f'buffer_load_dwordx4 v{vw[i]}, s[{SW1}:{SW1+3}], s{s_sw} offen offset:{1024*i} lds')
        a(f's_add_u32 s{s_sw}, s{s_sw}, {32*3072}')

    def issue_h(ring):
        for dd, sh in ((0, s_h0), (1, s_h1)):
            for stp in range(2):
                r = hf[ring][stp][dd]
                a(f'buffer_load_dwordx4 v[{r}:{r+3}], v{v_l16}, s[{SHF}:{SHF+3}], s{sh} offen offset:{1024*stp}')
        a(f's_add_u32 s{s_h0}, s{s_h0}, 2048')
        a(f's_add_u32 s{s_h1}, s{s_h1}, 2048')

    for k in range(4):
        issue_w(k)
    pf.stamp()
    for k in range(4):
        issue_h(k)
        issue_w(4 + k)
        pf.stamp()
    srd(a, SG, 30, 31, G_SZ, G_OFF)
    a(f'v_bfe_u32 v{t0}, v{v_lane}, 2, 2')
    a(f'v_lshl_add_u32 v{t1}, v{v_gp}, 3, v{t0}')
    a(f'v_lshlrev_b32 v{t1}, 7, v{t1}')
    a(f'v_bfe_u32 v{t0}, v{v_lane}, 3, 1')
    a(f'v_lshlrev_b32 v{t0}, 2, v{t0}')
    a(f'v_bfe_u32 v{t2}, v{v_lane}, 4, 1')
    a(f'v_lshl_or_b32 v{t0}, v{t2}, 1, v{t0}')
    a(f'v_bfe_u32 v{t2}, v{v_lane}, 1, 1')
    a(f'v_or_b32 v{t0}, v{t0}, v{t2}')
    a(f'v_lshl_add_u32 v{t1}, v{t0}, 4, v{t1}')
    a(f'v_and_b32 v{t2}, 1, v{v_lane}')
    a(f'v_lshl_add_u32 v{t1}, v{t2}, 3, v{t1}')
    a(f'v_add_u32 v{va[0]}, s{s_m0}, v{t1}')
    a(f'v_xor_b32 v{va[1]}, 64, v{va[0]}')
    a(f's_lshl_b32 s{s_t}, s{s_w}, 12')
    a(f's_add_u32 s{s_t}, s{s_t}, {P3_TB}')
    a(f'v_lshlrev_b32 v{t0}, 6, v{v_gp}')
    a(f'v_add_u32 v{vt}, s{s_t}, v{t0}')
    a(f'v_lshlrev_b32 v{t3}, 6, v{v_lane}')
    a(f'v_add_u32 v{t3}, s{s_t}, v{t3}')
    a(f's_mov_b32 s{s_t}, {f32(1.0/640)}')
    a(f's_mov_b32 s{s_u}, {f32(EPS)}')
    pf.stamp()
    a(f's_waitcnt vmcnt({4+32+16})')
    pf.stamp()
    Rr, Cc = tb[0], tb[0] + 8
    for i in range(8):
        m, q = stt + 2 * i, stt + 2 * i + 1
        a(f'v_mul_f32 v{m}, s{s_t}, v{m}')
        a(f'v_mul_f32 v{q}, s{s_t}, v{q}')
        a(f'v_fma_f32 v{q}, -v{m}, v{m}, v{q}')
        a(f'v_max_f32 v{q}, 0, v{q}')
        a(f'v_add_f32 v{Rr+i}, s{s_u}, v{q}')
        a(f'v_rsq_f32 v{Rr+i}, v{Rr+i}')
    for i in range(8):
        m, q = stt + 2 * i, stt + 2 * i + 1
        a(f'v_mul_f32 v{q}, v{q}, v{Rr+i}')
        a(f'v_fma_f32 v{q}, v{q}, v{Rr+i}, s{s_u}')
        a(f'v_rsq_f32 v{q}, v{q}')
    for i in range(8):
        m, q = stt + 2 * i, stt + 2 * i + 1
        a(f'v_mul_f32 v{q}, v{q}, v{Rr+i}')
        a(f'v_mul_f32 v{Cc+i}, v{m}, v{q}')
        a(f'v_sub_f32 v{Cc+i}, 0, v{Cc+i}')
        a(f'v_mov_b32 v{Rr+i}, v{q}')
    for k in range(4):
        a(f'ds_write_b128 v{t3}, v[{tb[0]+4*k}:{tb[0]+4*k+3}] offset:{16*k}')
    for ff in range(2):
        for dd in range(2):
            for k in range(16):
                a(f'v_mov_b32 v{acc[ff][dd]+k}, 0')
    a(f's_mov_b32 s{s_it}, 0')
    pf.stamp()
    a.lgkm0()
    a.label('P3_LOOP')
    a(f's_cmp_lt_u32 s{s_it}, 3')
    a(f's_cselect_b32 s{SHF+2}, {HF_SZ}, 0')
    a(f's_cmp_lt_u32 s{s_it}, 2')
    a(f's_cselect_b32 s{SW1+2}, 6291456, 0')
    for k in range(4):
        a('s_waitcnt vmcnt(28)')
        for stp in range(2):
            for q in range(4):
                a(f'ds_read_b128 v[{tb[stp]+4*q}:{tb[stp]+4*q+3}], v{vt} offset:{(2*k+stp)*128+16*q}')
        for stp in range(2):
            for ff in range(2):
                for h in range(2):
                    r = af[stp][ff] + 2 * h
                    a(f'ds_read_b64_tr_b16 v[{r}:{r+1}], v{va[ff]} offset:{k*4096+(16*stp+4*h)*128}')
        for stp in range(2):
            for dd in range(2):
                src = hf[k][stp][dd]
                T = tmp[dd]
                for e in range(4):
                    a(f'v_lshlrev_b32 v{T+2*e}, 16, v{src+e}')
                    a(f'v_and_b32 v{T+2*e+1}, 0xffff0000, v{src+e}')
                for e in range(8):
                    a(f'v_fma_f32 v{T+e}, v{T+e}, v{tb[stp]+e}, v{tb[stp]+8+e}')
            for dd in range(2):
                T = tmp[dd]
                for e in range(4):
                    a(f'v_cvt_pk_bf16_f32 v{hn[stp][dd]+e}, v{T+2*e}, v{T+2*e+1}')
            if stp == 1:
                issue_h(k)
            for ff in range(2):
                for dd in range(2):
                    A = acc[ff][dd]
                    a(f'v_mfma_f32_32x32x16_bf16 v[{A}:{A+15}], v[{af[stp][ff]}:{af[stp][ff]+3}], v[{hn[stp][dd]}:{hn[stp][dd]+3}], v[{A}:{A+15}]')
        issue_w(k)
    pf.lstamp(s_it)
    a(f'v_xor_b32 v{va[0]}, 16384, v{va[0]}')
    a(f'v_xor_b32 v{va[1]}, 16384, v{va[1]}')
    a(f'v_add_u32 v{vt}, 1024, v{vt}')
    a(f's_xor_b32 s{s_m0}, s{s_m0}, 16384')
    a(f's_add_u32 s{s_it}, s{s_it}, 1')
    a(f's_cmp_lt_u32 s{s_it}, 4')
    a('s_cbranch_scc1 P3_LOOP')
    a(f's_lshl_b32 s{s_t}, s{s_w}, 15')
    a(f'v_add_u32 v{t0}, s{s_t}, v{v_l16}')
    a(f's_lshl_b32 s{s_t}, s{s_w}, 12')
    a(f'v_add_u32 v{t1}, s{s_t}, v{v_l16}')
    a(f'v_add_u32 v{t2}, 65536, v{t1}')
    a('s_waitcnt vmcnt(0)')
    for ff in range(2):
        for dd in range(2):
            for q in range(4):
                A = acc[ff][dd] + 4 * q
                a(f'ds_write_b128 v{t0}, v[{A}:{A+3}] offset:{(2*ff+dd)*4096+q*1024}')
    a('s_waitcnt lgkmcnt(0)')
    a('s_barrier')
    pf.stamp()
    for src in range(4):
        A = acc[src >> 1][src & 1]
        for q in range(4):
            a(f'ds_read_b128 v[{A+4*q}:{A+4*q+3}], v{t1 if src < 2 else t2} offset:{(src&1)*32768+q*1024}')
    B = tb[0]
    for q in range(4):
        a(f'v_lshlrev_b32 v{B+4*q}, 16, v{b1r[q]}')
        a(f'v_and_b32 v{B+4*q+1}, 0xffff0000, v{b1r[q]}')
        a(f'v_lshlrev_b32 v{B+4*q+2}, 16, v{b1r[q]+1}')
        a(f'v_and_b32 v{B+4*q+3}, 0xffff0000, v{b1r[q]+1}')
    X = acc[0][0]
    for k in range(16):
        a(f'v_add_f32 v{X+k}, v{X+k}, v{acc[0][1]+k}')
        a(f'v_add_f32 v{acc[1][0]+k}, v{acc[1][0]+k}, v{acc[1][1]+k}')
        a(f'v_add_f32 v{X+k}, v{X+k}, v{B+k}')
        a(f'v_add_f32 v{X+k}, v{X+k}, v{acc[1][0]+k}')
    C = -2.0 * math.sqrt(2.0 / math.pi) * math.log2(math.e)
    a(f's_mov_b32 s{s_t}, {f32(0.044715*C)}')
    a(f'v_mov_b32 v{t3}, {f32(C)}')
    E = acc[0][1]
    for k in range(16):
        a(f'v_mul_f32 v{E+k}, v{X+k}, v{X+k}')
        a(f'v_fma_f32 v{E+k}, v{E+k}, s{s_t}, v{t3}')
        a(f'v_mul_f32 v{E+k}, v{E+k}, v{X+k}')
        a(f'v_exp_f32 v{E+k}, v{E+k}')
    for k in range(16):
        a(f'v_add_f32 v{E+k}, 1.0, v{E+k}')
        a(f'v_rcp_f32 v{E+k}, v{E+k}')
    for k in range(16):
        a(f'v_mul_f32 v{X+k}, v{X+k}, v{E+k}')
    Pk = acc[1][0]
    for k in range(8):
        a(f'v_cvt_pk_bf16_f32 v{Pk+k}, v{X+2*k}, v{X+2*k+1}')
    a(f'v_bfe_u32 v{t0}, v{v_lane}, 4, 1')
    a(f'v_mul_u32_u24 v{t0}, 49152, v{t0}')
    a(f'v_lshl_add_u32 v{t0}, v{v_gp}, 8, v{t0}')
    a(f'v_lshl_add_u32 v{t0}, v{v_l15}, 4, v{t0}')
    a(f's_and_b32 s{s_t}, s{s_w}, 1')
    a(f's_lshl_b32 s{s_u}, s{s_dt}, 1')
    a(f's_add_u32 s{s_t}, s{s_t}, s{s_u}')
    a(f's_mul_i32 s{s_t}, s{s_t}, 96')
    a(f's_lshl_b32 s{s_u}, s{s_ft}, 1')
    a(f's_add_u32 s{s_t}, s{s_t}, s{s_u}')
    a(f's_lshr_b32 s{s_u}, s{s_w}, 1')
    a(f's_add_u32 s{s_t}, s{s_t}, s{s_u}')
    a(f's_lshl_b32 s{s_t}, s{s_t}, 10')
    a(f'buffer_store_dwordx4 v[{Pk}:{Pk+3}], v{t0}, s[{SG}:{SG+3}], s{s_t} offen')
    a(f'buffer_store_dwordx4 v[{Pk+4}:{Pk+7}], v{t0}, s[{SG}:{SG+3}], s{s_t} offen offset:512')
    pf.flush(s_w, t0)
    a.label('P3_END')
    a('s_endpgm')
    return a, R.next


P4_LDS = 131072


def gen_p4():
    a = Asm()
    header(a, 'p4_kernel')
    SW2, SG, SHF, SB2, SOUT = 8, 12, 16, 20, 24
    s_w, s_dt, s_st, s_t, s_u, s_it = 32, 33, 34, 35, 36, 37
    s_sg, s_sw, s_m0, s_e = 38, 39, 40, 41
    R = RegAlloc(1, 256)
    v_lane, v_l15, v_g = R.get(), R.get(), R.get()
    t0, t1, t2, t3 = R.get(), R.get(), R.get(), R.get()
    v_l16 = R.get()
    vw = [R.get() for _ in range(4)]
    vg = [R.get() for _ in range(5)]
    vb = [R.get() for _ in range(4)]
    v_b2 = R.get()
    hr = [R.get(4) for _ in range(5)]
    idf = R.get(4)
    gf = [[R.get(4) for _ in range(5)] for _ in range(4)]
    acc = [[R.get(4) for _ in range(4)] for _ in range(5)]
    bf = [R.get(4) for _ in range(4)]
    pf = Prof(a, 3); pf.vp = R.get()
    a('s_cmp_ge_u32 s2, 256')
    a('s_cbranch_scc1 P4_END')
    pf.stamp()
    a('s_load_dwordx4 s[4:7], s[0:1], 48')
    a('s_load_dwordx2 s[28:29], s[0:1], 64')
    a('s_load_dwordx2 s[30:31], s[0:1], 80')
    a(f'v_lshrrev_b32 v{t0}, 6, v0')
    a(f'v_and_b32 v{v_lane}, 63, v0')
    a(f'v_readfirstlane_b32 s{s_w}, v{t0}')
    a(f'v_and_b32 v{v_l15}, 15, v0')
    a(f'v_bfe_u32 v{v_g}, v0, 4, 2')
    a(f'v_lshlrev_b32 v{v_l16}, 4, v{v_lane}')
    a(f's_and_b32 s{s_t}, s2, 7')
    a(f's_lshr_b32 s{s_u}, s2, 3')
    a(f's_lshr_b32 s{s_dt}, s{s_t}, 2')
    a(f's_lshl_b32 s{s_dt}, s{s_dt}, 2')
    a(f's_lshr_b32 s{s_st}, s{s_u}, 3')
    a(f's_add_u32 s{s_dt}, s{s_dt}, s{s_st}')
    a(f's_and_b32 s{s_t}, s{s_t}, 3')
    a(f's_lshl_b32 s{s_t}, s{s_t}, 3')
    a(f's_and_b32 s{s_st}, s{s_u}, 7')
    a(f's_add_u32 s{s_st}, s{s_st}, s{s_t}')
    a(f'v_bfe_u32 v{t0}, v{v_lane}, 1, 2')
    a(f'v_xor_b32 v{t0}, v{t0}, v{v_g}')
    a(f'v_and_b32 v{t1}, 1, v{v_lane}')
    a(f'v_lshl_add_u32 v{t0}, v{t0}, 1, v{t1}')
    a(f'v_lshrrev_b32 v{t1}, 3, v{v_lane}')
    a(f'v_lshlrev_b32 v{t1}, 12, v{t1}')
    a(f'v_lshl_add_u32 v{vw[0]}, v{t0}, 4, v{t1}')
    for i in range(1, 4):
        a(f'v_add_u32 v{vw[i]}, {i*(8*4096-1024)}, v{vw[0]}')
    a(f'v_mov_b32 v{vg[0]}, v{v_l16}')
    for t in range(1, 5):
        a(f'v_add_u32 v{vg[t]}, {t*49152}, v{v_l16}')
    a(f's_mul_i32 s{s_sw}, s{s_w}, {384*4096}')
    a(f's_lshl_b32 s{s_t}, s{s_st}, 7')
    a(f's_add_u32 s{s_sw}, s{s_sw}, s{s_t}')
    a(f's_mul_i32 s{s_sg}, s{s_dt}, 240')
    a(f's_mul_i32 s{s_t}, s{s_w}, 12')
    a(f's_add_u32 s{s_sg}, s{s_sg}, s{s_t}')
    a(f's_lshl_b32 s{s_sg}, s{s_sg}, 10')
    a(f's_lshl_b32 s{s_m0}, s{s_w}, 15')
    a(f'v_lshlrev_b32 v{t2}, 9, v{v_g}')
    a(f'v_lshl_add_u32 v{t2}, v{v_l15}, 4, v{t2}')
    a(f'v_lshlrev_b32 v{t3}, 1, v{v_l15}')
    a('s_waitcnt lgkmcnt(0)')
    pf.stamp()
    srd(a, SW2, 4, 5, 6291456)
    srd(a, SG, 30, 31, G_SZ, G_OFF)

    def issue_w(slot):
        a(f's_add_u32 m0, s{s_m0}, {slot*4096}')
        a('s_nop 0')
        for i in range(4):
            a(f'buffer_load_dwordx4 v{vw[i]}, s[{SW2}:{SW2+3}], s{s_sw} offen offset:{1024*i} lds')
        a(f's_add_u32 s{s_sw}, s{s_sw}, {32*4096}')

    def issue_g(ring):
        for t in range(5):
            r = gf[ring][t]
            a(f'buffer_load_dwordx4 v[{r}:{r+3}], v{vg[t]}, s[{SG}:{SG+3}], s{s_sg} offen')
        a(f's_add_u32 s{s_sg}, s{s_sg}, 1024')

    srd(a, SHF, 30, 31, HF_SZ, HF_OFF)
    srd(a, SB2, 6, 7, 4096)
    a(f's_lshl_b32 s{s_t}, s{s_st}, 2')
    a(f's_add_u32 s{s_t}, s{s_t}, s{s_w}')
    a(f's_lshl_b32 s{s_u}, s{s_t}, 5')
    a(f'buffer_load_ushort v{v_b2}, v{t3}, s[{SB2}:{SB2+3}], s{s_u} offen')
    a(f's_and_b32 s{s_e}, s{s_t}, 0xfffffffe')
    for t in range(5):
        a(f's_mul_i32 s{s_t}, s{s_dt}, 5')
        a(f's_add_u32 s{s_t}, s{s_t}, {t}')
        a(f's_lshr_b32 s{s_u}, s{s_t}, 1')
        a(f's_lshl_b32 s{s_u}, s{s_u}, 7')
        a(f's_add_u32 s{s_u}, s{s_u}, s{s_e}')
        a(f's_lshl_b32 s{s_u}, s{s_u}, 10')
        a(f's_and_b32 s{s_t}, s{s_t}, 1')
        a(f's_lshl_b32 s{s_t}, s{s_t}, 8')
        a(f's_add_u32 s{s_u}, s{s_u}, s{s_t}')
        a(f'buffer_load_dwordx4 v[{hr[t]}:{hr[t]+3}], v{t2}, s[{SHF}:{SHF+3}], s{s_u} offen')
    pf.stamp()
    for k in range(4):
        issue_w(k)
    pf.stamp()
    for k in range(4):
        issue_g(k)
        issue_w(4 + k)
        pf.stamp()
    srd(a, SOUT, 28, 29, 2621440)
    a(f's_and_b32 s{s_e}, s{s_w}, 1')
    a(f's_lshl_b32 s{s_e}, s{s_e}, 1')
    ident_frag(a, idf, v_l15, v_g, f's{s_e}', t0, t1, t2, 42)
    a(f'v_bfe_u32 v{t0}, v{v_lane}, 2, 2')
    a(f'v_and_b32 v{t1}, 1, v{v_g}')
    a(f'v_lshl_add_u32 v{t2}, v{t1}, 2, v{t0}')
    a(f'v_lshrrev_b32 v{t3}, 1, v{v_g}')
    a(f'v_lshl_add_u32 v{t2}, v{t3}, 4, v{t2}')
    a(f'v_lshlrev_b32 v{t2}, 7, v{t2}')
    a(f'v_lshrrev_b32 v{t0}, 1, v{t0}')
    a(f'v_lshl_add_u32 v{t0}, v{t1}, 1, v{t0}')
    a(f'v_lshl_add_u32 v{t2}, v{t0}, 5, v{t2}')
    a(f'v_and_b32 v{t1}, 3, v{v_lane}')
    a(f'v_lshl_add_u32 v{t2}, v{t1}, 3, v{t2}')
    a(f'v_add_u32 v{vb[0]}, s{s_m0}, v{t2}')
    for n in range(1, 4):
        a(f'v_xor_b32 v{vb[n]}, {32*n}, v{vb[0]}')
    for t in range(5):
        for n in range(4):
            for k in range(4):
                a(f'v_mov_b32 v{acc[t][n]+k}, 0')
    a(f's_mov_b32 s{s_it}, 0')
    pf.stamp()
    a.label('P4_LOOP')
    a(f's_cmp_lt_u32 s{s_it}, 2')
    a(f's_cselect_b32 s{SG+2}, {G_SZ}, 0')
    a(f's_cmp_lt_u32 s{s_it}, 1')
    a(f's_cselect_b32 s{SW2+2}, 6291456, 0')
    for k in range(4):
        a('s_waitcnt vmcnt(31)')
        for n in range(4):
            for h in range(2):
                r = bf[n] + 2 * h
                a(f'ds_read_b64_tr_b16 v[{r}:{r+1}], v{vb[n]} offset:{k*4096+h*1024}')
        for n in range(4):
            for t in range(5):
                A = acc[t][n]
                a(f'v_mfma_f32_16x16x32_bf16 v[{A}:{A+3}], v[{gf[k][t]}:{gf[k][t]+3}], v[{bf[n]}:{bf[n]+3}], v[{A}:{A+3}]')
        issue_g(k)
        issue_w(k)
    pf.lstamp(s_it)
    for n in range(4):
        a(f'v_xor_b32 v{vb[n]}, 16384, v{vb[n]}')
    a(f's_xor_b32 s{s_m0}, s{s_m0}, 16384')
    a(f's_add_u32 s{s_it}, s{s_it}, 1')
    a(f's_cmp_lt_u32 s{s_it}, 3')
    a('s_cbranch_scc1 P4_LOOP')
    a(f's_lshl_b32 s{s_t}, s{s_w}, 15')
    a(f'v_add_u32 v{t0}, s{s_t}, v{v_l16}')
    a(f's_mul_i32 s{s_t}, s{s_w}, 5120')
    a(f'v_add_u32 v{t1}, s{s_t}, v{v_l16}')
    a(f'v_add_u32 v{t2}, 65536, v{t1}')
    a('s_waitcnt vmcnt(0)')
    for n in range(4):
        for t in range(5):
            A = acc[t][n]
            a(f'ds_write_b128 v{t0}, v[{A}:{A+3}] offset:{(5*n+t)*1024}')
    a('s_waitcnt lgkmcnt(0)')
    a('s_barrier')
    pf.stamp()
    for t in range(5):
        for src in range(4):
            A = acc[t][src]
            a(f'ds_read_b128 v[{A}:{A+3}], v{t1 if src < 2 else t2} offset:{(src&1)*32768+t*1024}')
    a(f'v_lshlrev_b32 v{v_b2}, 16, v{v_b2}')
    a(f's_lshl_b32 s{s_t}, s{s_st}, 2')
    a(f's_add_u32 s{s_t}, s{s_t}, s{s_w}')
    a(f's_lshl_b32 s{s_t}, s{s_t}, 4')
    a(f'v_add_u32 v{t0}, s{s_t}, v{v_l15}')
    a(f'v_mul_u32_u24 v{t0}, 1280, v{t0}')
    a(f'v_lshl_add_u32 v{t0}, v{v_g}, 3, v{t0}')
    a(f's_mul_i32 s{s_t}, s{s_dt}, 160')
    for t in range(5):
        A = acc[t]
        for k in range(4):
            a(f'v_add_f32 v{A[0]+k}, v{A[0]+k}, v{A[1]+k}')
            a(f'v_add_f32 v{A[2]+k}, v{A[2]+k}, v{A[3]+k}')
            a(f'v_add_f32 v{A[0]+k}, v{A[0]+k}, v{v_b2}')
            a(f'v_add_f32 v{A[0]+k}, v{A[0]+k}, v{A[2]+k}')
        a(f'v_mfma_f32_16x16x32_bf16 v[{A[0]}:{A[0]+3}], v[{hr[t]}:{hr[t]+3}], v[{idf}:{idf+3}], v[{A[0]}:{A[0]+3}]')
    for t in range(5):
        A = acc[t][0]
        a(f'v_cvt_pk_bf16_f32 v{A}, v{A}, v{A+1}')
        a(f'v_cvt_pk_bf16_f32 v{A+1}, v{A+2}, v{A+3}')
        a(f'buffer_store_dwordx2 v[{A}:{A+1}], v{t0}, s[{SOUT}:{SOUT+3}], s{s_t} offen offset:{32*t}')
    pf.flush(s_w, t0)
    a.label('P4_END')
    a('s_endpgm')
    return a, R.next


def kd(name, nv):
    nv = (nv + 7) // 8 * 8
    return f""".p2align 6
.amdhsa_kernel {name}
  .amdhsa_next_free_vgpr {nv}
  .amdhsa_next_free_sgpr 102
  .amdhsa_accum_offset {nv}
  .amdhsa_group_segment_fixed_size 0
  .amdhsa_kernarg_size 88
  .amdhsa_user_sgpr_count 2
  .amdhsa_user_sgpr_kernarg_segment_ptr 1
  .amdhsa_system_sgpr_workgroup_id_x 1
.end_amdhsa_kernel
"""


def main(out):
    ref = open(f'cdna_kernels/{NAME}.s.ref').read()
    hdr = ref.split('; Override launch')[0]
    ks = [('p1_kernel', gen_p1(), 256, 512, P1_LDS), ('p2_kernel', gen_p2(), 256, 256, P2_LDS),
          ('p3_kernel', gen_p3(), 240, 256, P3_LDS), ('p4_kernel', gen_p4(), 256, 256, P4_LDS)]
    s = hdr
    for n, _, g, b, l in ks:
        s += f'; @launch kernel={n} grid=({g},1,1) block=({b},1,1) lds={l}\n'
    s += '.amdgcn_target "amdgcn-amd-amdhsa--gfx950"\n.text\n'
    for n, (a, nv), g, b, l in ks:
        s += a.text()
        print(n, 'insts', a.n_inst, 'vgprs', nv, file=sys.stderr)
    s += '.section .rodata,"a"\n'
    for n, (a, nv), g, b, l in ks:
        s += kd(n, nv)
    open(out, 'w').write(s)


if __name__ == '__main__':
    if len(sys.argv) > 2 and sys.argv[2] == 'prof':
        PROF = True
    main(sys.argv[1] if len(sys.argv) > 1 else f'cdna_kernels/{NAME}.s')
```
